```python
import torch

def _softmax(x, axis=-1):
    return torch.softmax(x, dim=axis)
def _gelu(x):
    return torch.nn.functional.gelu(x, approximate="tanh")
def _silu(x):
    return torch.nn.functional.silu(x)
def _sigmoid(x):
    return torch.sigmoid(x)
def _layernorm(x, axis=-1, eps=1e-5):
    m = x.mean(dim=axis, keepdim=True)
    v = x.var(dim=axis, keepdim=True, unbiased=False)
    return (x - m) / torch.sqrt(v + eps)
def _scatter_add(tgt, idx, src, axis=0):
    return tgt.clone().index_add_(axis, idx, src)
def _segment_sum(src, seg, n):
    out = torch.zeros((n,) + src.shape[1:], dtype=src.dtype)
    return out.index_add_(0, seg, src)
def _pad(x, pw):
    flat = tuple(v for pair in reversed(pw) for v in pair)
    return torch.nn.functional.pad(x, flat)

kernel_name = 'sequential_preLN__spectral_gfnet__glu_gated_swiglu__prompt'

def setup_inputs():

    _w = (lambda a: (lambda t: t.to(torch.bfloat16) if t.is_floating_point() else t)(torch.as_tensor(a)))
    def _A_setup():
        B, S, D = 1, 2048, 640
        Df = D // 2 + 1
        return {
            "x": _w((lambda *s: torch.randn(*s, dtype=torch.bfloat16) * 0.05)(B, S, D)),
            "w_r": _w((lambda *s: torch.randn(*s, dtype=torch.bfloat16) * 0.4)(S, Df) * 0.02),
            "w_i": _w((lambda *s: torch.randn(*s, dtype=torch.bfloat16) * 0.4)(S, Df) * 0.02),
        }
    _A_in = _A_setup()

    def _B_setup():
        B, S, D, F = 1, 2048, 640, 1536
        return {
            "x": _w((lambda *s: torch.randn(*s, dtype=torch.bfloat16) * 0.05)(B, S, D)),
            "w1": _w((lambda *s: torch.randn(*s, dtype=torch.bfloat16) * 0.2)(D, F) * (2.0 / D) ** 0.5),
            "w3": _w((lambda *s: torch.randn(*s, dtype=torch.bfloat16) * 0.2)(D, F) * (2.0 / D) ** 0.5),
            "w2": _w((lambda *s: torch.randn(*s, dtype=torch.bfloat16) * 0.2)(F, D) * (2.0 / F) ** 0.5),
        }
    _B_in = _B_setup()

    return {
        "A_x": _A_in["x"],
        "A_w_r": _A_in["w_r"],
        "A_w_i": _A_in["w_i"],
        "B_x": _B_in["x"],
        "B_w1": _B_in["w1"],
        "B_w3": _B_in["w3"],
        "B_w2": _B_in["w2"],
    }

def reference(A_x, A_w_r, A_w_i, B_x, B_w1, B_w3, B_w2):
    def _A_ref(x, w_r, w_i):
        B, S, D = x.shape
        X = (lambda x, axes=(-2,-1): torch.fft.rfft2(x.float(), dim=axes))(x, axes=(-2, -1))
        W = w_r + 1j * w_i
        X = X * W
        y = (lambda x, s, axes=(-2,-1): torch.fft.irfft2(x, s=s, dim=axes).to(torch.bfloat16))(X, (S, D), axes=(-2, -1))
        return y

    def _B_ref(x, w1, w3, w2):
        gate = torch.einsum("bsd,df->bsf", x, w1)
        up = torch.einsum("bsd,df->bsf", x, w3)
        h = _silu(gate) * up
        out = torch.einsum("bsf,fd->bsd", h, w2)
        return out

    x = A_x
    h = x + _A_ref(_layernorm(x, axis=-1), A_w_r, A_w_i)
    h2 = h + _B_ref(_layernorm(h, axis=-1), B_w1, B_w3, B_w2)
    return h2
```

```python
import re

def vr(a, n=1):
    return f"v{a}" if n == 1 else f"v[{a}:{a+n-1}]"
def sr(a, n=1):
    return f"s{a}" if n == 1 else f"s[{a}:{a+n-1}]"
def ar(a, n=1):
    return f"a{a}" if n == 1 else f"a[{a}:{a+n-1}]"

_REG = re.compile(r'^-?\|?(abs\()?([vsa])(\d+|\[(\d+):(\d+)\])\)?\|?$')
def regs_of(tok):
    tok = tok.strip()
    if tok in ('vcc',): return {('s', 'vcc')}
    if tok in ('vcc_lo','vcc_hi'): return {('s','vcc')}
    if tok == 'exec': return {('s','exec')}
    if tok == 'm0': return {('s','m0')}
    m = _REG.match(tok)
    if not m: return set()
    kind = m.group(2)
    if m.group(4) is not None:
        lo, hi = int(m.group(4)), int(m.group(5))
    else:
        lo = hi = int(m.group(3))
    return {(kind, i) for i in range(lo, hi+1)}

TRANS = ('v_exp_f32','v_log_f32','v_rcp_f32','v_rsq_f32','v_sqrt_f32','v_sin_f32','v_cos_f32','v_rcp_iflag_f32')

class Ins:
    __slots__ = ('text','op','ops','defs','uses','kind','mods')
    def __init__(self, text):
        self.text = text
        t = text.split(';')[0].strip()
        parts = t.split(None, 1)
        self.op = parts[0]
        rest = parts[1] if len(parts) > 1 else ''
        toks = [x.strip() for x in re.split(r',(?![^\[]*\])', rest)] if rest else []
        ops = []; mods = ''
        for i, x in enumerate(toks):
            if i == len(toks)-1:
                sp = x.split(None, 1)
                ops.append(sp[0]);
                if len(sp) > 1: mods = sp[1]
            else:
                ops.append(x.split()[0] if x else x)
        self.ops = ops; self.mods = mods
        op = self.op
        R = [regs_of(o) for o in ops]
        defs = set(); uses = set()
        if op.startswith('v_mfma') or op.startswith('v_smfmac'):
            kind = 'mfma'; defs = R[0]; uses = R[1] | R[2] | (R[3] if len(R) > 3 else set())
        elif op.startswith('v_'):
            kind = 'valu'
            base = op.replace('_e32','').replace('_e64','').replace('_dpp','').replace('_sdwa','')
            if base.startswith('v_cmpx'):
                defs = R[0] | {('s','exec')}; uses = set().union(*R[1:])
            elif base.startswith('v_cmp'):
                defs = R[0]; uses = set().union(*R[1:])
            elif base.startswith('v_permlane16_swap') or base.startswith('v_permlane32_swap'):
                defs = R[0] | R[1]; uses = R[0] | R[1]
            elif base in ('v_add_co_u32','v_sub_co_u32','v_subrev_co_u32','v_addc_co_u32','v_subb_co_u32','v_div_scale_f32','v_mad_u64_u32'):
                defs = R[0] | R[1]; uses = set().union(*R[2:])
            elif base == 'v_nop':
                pass
            else:
                defs = R[0]; uses = set().union(*R[1:]) if len(R) > 1 else set()
                if base in ('v_fmac_f32','v_pk_fmac_f16','v_fmac_f16','v_dot2c_f32_bf16','v_writelane_b32') or 'dpp' in op or 'row_' in mods or 'quad_perm' in mods or 'sdwa' in op or 'dst_sel' in mods:
                    uses |= R[0]
                if base in ('v_cndmask_b32',) and len(ops) == 3:
                    uses |= {('s','vcc')}
        elif op.startswith('ds_'):
            kind = 'ds'
            if op.startswith('ds_read') or op.startswith('ds_bpermute') or op.startswith('ds_permute') or op.startswith('ds_swizzle'):
                defs = R[0]; uses = set().union(*R[1:]) if len(R) > 1 else set()
            else:
                uses = set().union(*R)
        elif op.startswith('buffer_') or op.startswith('global_') or op.startswith('flat_'):
            kind = 'vmem'
            lds = ' lds' in (' '+mods) or op.startswith('global_load_lds')
            if op in ('buffer_wbl2','buffer_inv'):
                pass
            elif 'load' in op and not lds:
                defs = R[0]; uses = set().union(*R[1:])
            elif 'atomic' in op and 'sc0' in mods:
                if op.startswith('buffer_'):
                    defs = R[0]; uses = set().union(*R)
                else:
                    defs = R[0]; uses = set().union(*R[1:])
            else:
                uses = set().union(*R)
                if lds: uses |= {('s','m0')}
        elif op.startswith('s_'):
            kind = 'salu'
            if op in ('s_waitcnt','s_nop','s_barrier','s_endpgm','s_branch','s_setprio','s_sleep') or op.startswith('s_cbranch'):
                pass
            elif op.startswith('s_cmp'):
                uses = set().union(*R)
            elif op.startswith('s_load') or op.startswith('s_buffer_load'):
                kind = 'smem'; defs = R[0]; uses = set().union(*R[1:])
            else:
                defs = R[0] if R else set(); uses = set().union(*R[1:]) if len(R) > 1 else set()
                if 'saveexec' in op: defs = defs | {('s','exec')}
        else:
            raise ValueError("unknown instruction: " + text)
        self.defs, self.uses, self.kind = defs, uses, kind

    def states(self):
        if self.op == 's_nop': return int(self.ops[0], 0) + 1
        return 1

def mfma_passes(op):
    if '32x32x16' in op or '32x32x8' in op: return 8
    if '16x16x32' in op or '16x16x16' in op: return 4
    raise ValueError(op)

def base_op(op):
    return op.replace('_e32','').replace('_e64','')

def need(prod, cons):
    n = 0
    pv = {r for r in prod.defs if r[0] in 'va'}
    ps = {r for r in prod.defs if r[0] == 's'}
    cu = cons.uses; cd = cons.defs
    if prod.kind == 'valu':
        if cons.kind == 'mfma' and pv & cu: n = max(n, 2)
        if cons.kind == 'valu':
            isdpp = ('dpp' in cons.op) or ('row_' in cons.mods) or ('quad_perm' in cons.mods) or ('row_bcast' in cons.mods)
            if isdpp and pv & cu: n = max(n, 2)
            if isdpp and ('s','exec') in ps: n = max(n, 5)
            if cons.op.startswith('v_permlane') and pv & cu: n = max(n, 2)
            if cons.op.startswith('v_permlane') and ('s','exec') in ps: n = max(n, 4)
            if (cons.op.startswith('v_readlane') or cons.op.startswith('v_readfirstlane')) and pv & cu: n = max(n, 1)
            if (cons.op.startswith('v_readlane') or cons.op.startswith('v_readfirstlane') or cons.op.startswith('v_writelane')) and ('s','exec') in ps: n = max(n, 4)
            if (cons.op.startswith('v_readlane') or cons.op.startswith('v_writelane')) and ps & regs_of(cons.ops[2]): n = max(n, 4)
            if (ps - {('s','exec')}) & cu: n = max(n, 2)
            if ('s','exec') in ps and ('s','exec') in cu: n = max(n, 2)
            if base_op(prod.op) in TRANS and pv & cu and True: n = max(n, 1)
            if ('dst_sel' in prod.mods or 'op_sel' in prod.mods) and pv & (cu | cd): n = max(n, 1)
            if cons.op.startswith('v_div_fmas') and ('s','vcc') in ps: n = max(n, 4)
        if cons.kind == 'vmem' and ps & cu: n = max(n, 5)
        if cons.kind == 'mfma' and ('s','exec') in ps: n = max(n, 4)
        if cons.kind in ('salu','smem') and ps & cu: n = max(n, 4)
    if prod.kind == 'salu':
        if ('s','m0') in ps and cons.kind in ('vmem','ds') and ('s','m0') in cu: n = max(n, 1)
    if prod.kind == 'mfma':
        p = mfma_passes(prod.op)
        tab = {4: (0, 6, 8, 8), 8: (0, 10, 12, 12)}[p]
        if cons.kind == 'mfma':
            ab = regs_of(cons.ops[1]) | regs_of(cons.ops[2])
            c = regs_of(cons.ops[3]) if len(cons.ops) > 3 else set()
            if pv & ab: n = max(n, tab[2])
            if pv & c:
                if c == pv and mfma_passes(cons.op) == p: n = max(n, tab[0])
                else: n = max(n, tab[1])
            elif pv & cd:
                n = max(n, tab[1])
        elif cons.kind in ('valu','vmem','ds'):
            if pv & (cu | cd): n = max(n, tab[3])
        if cons.kind == 'valu':
            c = regs_of(prod.ops[3]) if len(prod.ops) > 3 else set()
            if c & cd: n = max(n, {4: 3, 8: 7}[p])
    if prod.kind == 'vmem' and 'store' in prod.op and ('x4' in prod.op or 'x3' in prod.op):
        if cd & {r for r in prod.uses if r[0] in 'va'} and cons.kind in ('valu','mfma'):
            data = regs_of(prod.ops[0]) if prod.op.startswith('buffer_') else regs_of(prod.ops[1])
            if cd & data: n = max(n, 2)
    if prod.kind == 'ds' and ('write' in prod.op) and ('b128' in prod.op or 'b96' in prod.op):
        if cons.kind == 'valu' and cd & regs_of(prod.ops[1]): n = max(n, 2)
    return n

class Kern:
    def __init__(self, name):
        self.name = name
        self.items = []
    def __call__(self, text):
        for line in text.strip().split('\n'):
            line = line.strip()
            if not line or line.startswith(';'):
                continue
            if line.endswith(':'):
                self.items.append(('label', line[:-1]))
            elif line.startswith('.'):
                self.items.append(('raw', line))
            else:
                self.items.append(Ins(line))
    def label(self, n): self.items.append(('label', n))
    def finalize(self):
        out = []
        def pad_for(hist, ins):
            req = 0; dist = 0
            for p in reversed(hist):
                if dist >= 20: break
                nd = need(p, ins)
                if nd - dist > req: req = nd - dist
                dist += p.states()
            return req
        hist = []
        labels = {}
        for it in self.items:
            if isinstance(it, Ins):
                req = pad_for(hist, it)
                if req > 0:
                    nop = Ins(f"s_nop {req-1}")
                    out.append(nop); hist.append(nop)
                out.append(it); hist.append(it)
                if it.op == 's_branch' or it.op == 's_endpgm':
                    hist = hist
            else:
                if it[0] == 'label': labels[it[1]] = len(out)
                out.append(it)
        changed = True; guard = 0
        while changed:
            changed = False; guard += 1
            assert guard < 50
            labels = {it[1]: i for i, it in enumerate(out) if not isinstance(it, Ins) and it[0] == 'label'}
            for i, it in enumerate(out):
                if isinstance(it, Ins) and (it.op.startswith('s_cbranch') or it.op == 's_branch'):
                    tgt = labels.get(it.ops[0])
                    if tgt is None: continue
                    h = [x for x in out[max(0, i-40):i+1] if isinstance(x, Ins)]
                    j = tgt; seen = 0
                    sim = list(h)
                    while j < len(out) and seen < 20:
                        x = out[j]
                        if isinstance(x, Ins):
                            req = pad_for(sim, x)
                            if req > 0:
                                out.insert(j, Ins(f"s_nop {req-1}"))
                                changed = True
                                break
                            sim.append(x); seen += x.states()
                            if x.op in ('s_branch','s_endpgm'): break
                        j += 1
                    if changed: break
        self.out = out
        return out
    def text(self):
        o = self.finalize()
        s = f".globl {self.name}\n.p2align 8\n.type {self.name},@function\n{self.name}:\n"
        for it in o:
            if isinstance(it, Ins): s += "    " + it.text + "\n"
            elif it[0] == 'label': s += it[1] + ":\n"
            else: s += "    " + it[1] + "\n"
        return s
    def maxregs(self):
        mv = ma = ms = -1
        for it in self.items:
            if isinstance(it, Ins):
                for k, i in it.defs | it.uses:
                    if k == 'v': mv = max(mv, i)
                    elif k == 'a': ma = max(ma, i)
                    elif k == 's' and isinstance(i, int): ms = max(ms, i)
        return mv+1, ma+1, ms+1
    def descriptor(self):
        nv, na, ns = self.maxregs()
        acc = max(4, (nv + 3)//4*4)
        tot = acc + na if na > 0 else max(nv, 1)
        return f""".p2align 6
.amdhsa_kernel {self.name}
  .amdhsa_next_free_vgpr {tot}
  .amdhsa_next_free_sgpr {max(ns, 32)}
  .amdhsa_accum_offset {acc}
  .amdhsa_group_segment_fixed_size 0
  .amdhsa_kernarg_size 80
  .amdhsa_user_sgpr_count 2
  .amdhsa_user_sgpr_kernarg_segment_ptr 1
  .amdhsa_system_sgpr_workgroup_id_x 1
.end_amdhsa_kernel
"""

HEADER = None
def build_file(header_comment, kernels):
    s = header_comment
    for k, g, b, l in kernels:
        s += f"; @launch kernel={k.name} grid=({g},1,1) block=({b},1,1) lds={l}\n"
    s += '.amdgcn_target "amdgcn-amd-amdhsa--gfx950"\n.text\n'
    seen = []
    for k, *_ in kernels:
        if k not in seen:
            seen.append(k); s += k.text()
    s += '.section .rodata,"a"\n'
    for k in seen: s += k.descriptor()
    return s
```

```python
from asmlib import *
import struct, math

NAME = "sequential_preLN__spectral_gfnet__glu_gated_swiglu__prompt"
S, D, F, NF = 2048, 640, 1536, 321
WS_V1, SZ_V = 0x000000, 8*11*256*128
WS_V2 = 0x300000
WS_HR, SZ_H = 0x600000, S*D*2
WS_LN2 = 0x900000
WS_W13, SZ_W13 = 0xC00000, 16*20*12*1024
WS_W2, SZ_W2 = 0x1000000, F*D*2
WS_HA, SZ_HA = 0x1200000, S*F*2

def f32(x):
    return "0x%08x" % struct.unpack("<I", struct.pack("<f", x))[0]

class Alloc:
    def __init__(self, start=0, limit=256):
        self.used = [False]*limit
        for i in range(start): self.used[i] = True
    def __call__(self, n=1, align=None):
        if align is None: align = 1 if n == 1 else (2 if n < 4 else 4) if n in (2,3,4) else 4
        i = 0
        while i + n <= len(self.used):
            if i % align == 0 and not any(self.used[i:i+n]):
                for k in range(i, i+n): self.used[k] = True
                return i
            i += 1
        raise RuntimeError("out of registers")
    def free(self, a, n=1):
        for k in range(a, a+n):
            assert self.used[k]; self.used[k] = False

def srd(k, s, base_pair, off, nbytes):
    if off:
        k(f"s_add_u32 s{s}, s{base_pair}, {hex(off)}")
        k(f"s_addc_u32 s{s+1}, s{base_pair+1}, 0")
    else:
        k(f"s_mov_b32 s{s}, s{base_pair}")
        k(f"s_mov_b32 s{s+1}, s{base_pair+1}")
    k(f"s_mov_b32 s{s+2}, {hex(nbytes)}")
    k(f"s_mov_b32 s{s+3}, 0x00020000")

def guard(k, nwg):
    k(f"s_cmp_ge_u32 s2, {nwg}")
    k(f"s_cbranch_scc1 {k.name}_end")

def wave_sum(k, v, sdst):
    k(f"v_add_f32_dpp v{v}, v{v}, v{v} quad_perm:[1,0,3,2] row_mask:0xf bank_mask:0xf")
    k(f"v_add_f32_dpp v{v}, v{v}, v{v} quad_perm:[2,3,0,1] row_mask:0xf bank_mask:0xf")
    k(f"v_add_f32_dpp v{v}, v{v}, v{v} row_half_mirror row_mask:0xf bank_mask:0xf")
    k(f"v_add_f32_dpp v{v}, v{v}, v{v} row_mirror row_mask:0xf bank_mask:0xf")
    k(f"v_add_f32_dpp v{v}, v{v}, v{v} row_bcast:15 row_mask:0xa bank_mask:0xf")
    k(f"v_add_f32_dpp v{v}, v{v}, v{v} row_bcast:31 row_mask:0xc bank_mask:0xf")
    k(f"v_readlane_b32 s{sdst}, v{v}, 63")

def mfma(k, d, a, b, c):
    cs = "0" if c is None else vr(c, 4)
    k(f"v_mfma_f32_16x16x32_bf16 {vr(d,4)}, {vr(a,4)}, {vr(b,4)}, {cs}")

def round_bf16(k, dst, src):
    k(f"v_cvt_pk_bf16_f32 v{dst}, v{src}, v{src}")
    k(f"v_and_b32 v{dst}, 0xffff0000, v{dst}")
```

```python
from common import *

def ln_row(k, va, vx, n, sA, sB, tail=None):
    f = va(2*n, 1); acc = va(2, 1); mu = va(); mb = va(); t = va()
    for i in range(n):
        k(f"v_lshlrev_b32 v{f+2*i}, 16, v{vx+i}")
        k(f"v_and_b32 v{f+2*i+1}, 0xffff0000, v{vx+i}")
    k(f"v_add_f32 v{acc}, v{f}, v{f+1}")
    k(f"v_add_f32 v{acc+1}, v{f+2}, v{f+3}")
    for i in range(4, 2*n):
        k(f"v_add_f32 v{acc+(i&1)}, v{acc+(i&1)}, v{f+i}")
    k(f"v_add_f32 v{acc}, v{acc}, v{acc+1}")
    wave_sum(k, acc, sA)
    k(f"v_mov_b32 v{mu}, {f32(1/640)}")
    k(f"v_mul_f32 v{mu}, s{sA}, v{mu}")
    round_bf16(k, mb, mu)
    d = va(2, 1)
    for i in range(2*n):
        k(f"v_sub_f32 v{d+(i&1)}, v{f+i}, v{mu}")
        if tail and i >= 2*(n-tail[0]): k(f"v_cndmask_b32 v{d+(i&1)}, 0, v{d+(i&1)}, {tail[1]}")
        if i < 2: k(f"v_mul_f32 v{acc+i}, v{d+i}, v{d+i}")
        else: k(f"v_fmac_f32 v{acc+(i&1)}, v{d+(i&1)}, v{d+(i&1)}")
    k(f"v_add_f32 v{acc}, v{acc}, v{acc+1}")
    for i in range(2*n):
        k(f"v_sub_f32 v{f+i}, v{f+i}, v{mb}")
    wave_sum(k, acc, sB)
    for i in range(n):
        k(f"v_cvt_pk_bf16_f32 v{vx+i}, v{f+2*i}, v{f+2*i+1}")
    k(f"v_mov_b32 v{t}, {f32(1/640)}")
    k(f"v_mul_f32 v{t}, s{sB}, v{t}")
    round_bf16(k, t, t)
    k(f"v_add_f32 v{t}, {f32(1e-5)}, v{t}")
    round_bf16(k, t, t)
    k(f"v_sqrt_f32 v{t}, v{t}")
    for i in range(n):
        k(f"v_lshlrev_b32 v{f+2*i}, 16, v{vx+i}")
        k(f"v_and_b32 v{f+2*i+1}, 0xffff0000, v{vx+i}")
    round_bf16(k, t, t)
    k(f"v_rcp_f32 v{t}, v{t}")
    for i in range(2*n):
        k(f"v_mul_f32 v{f+i}, v{f+i}, v{t}")
    for i in range(n):
        k(f"v_cvt_pk_bf16_f32 v{vx+i}, v{f+2*i}, v{f+2*i+1}")
    va.free(f, 2*n); va.free(acc, 2); va.free(mu); va.free(mb); va.free(t); va.free(d, 2)

XROW = 1344
P1_U = 8*XROW
P1_LDS = P1_U + 8*384*4

def gen_p1():
    k = Kern("p1_kernel")
    guard(k, 256)
    k("s_load_dwordx2 s[4:5], s[0:1], 0")
    k("s_load_dwordx2 s[6:7], s[0:1], 72")
    va = Alloc(1)
    vl, vg, vc, t0, t1, t2 = va(), va(), va(), va(), va(), va()
    k(f"v_and_b32 v{vl}, 63, v0")
    k(f"v_lshrrev_b32 v{t0}, 6, v0")
    k(f"v_readfirstlane_b32 s3, v{t0}")
    k(f"v_lshrrev_b32 v{vg}, 4, v{vl}")
    k(f"v_and_b32 v{vc}, 15, v0")
    k(f"v_lshlrev_b32 v{t0}, 2, v{vl}")
    k("s_lshl_b32 s8, s3, 8")
    k("s_add_u32 s8, s8, s2")
    k("s_mul_i32 s8, s8, 1280")
    k("s_waitcnt lgkmcnt(0)")
    srd(k, 12, 4, 0, S*D*2)
    vx = va(5, 1)
    for i in range(5):
        k(f"buffer_load_dword v{vx+i}, v{t0}, s[12:15], s8 offen offset:{256*i}")
    srd(k, 16, 6, WS_V1, SZ_V)
    gf, cf = va(), va()
    k(f"v_cvt_f32_u32 v{gf}, v{vg}")
    k(f"v_cvt_f32_u32 v{cf}, v{vc}")
    C1 = va(4); S1 = va(4)
    pf = va()
    k(f"v_mul_f32 v{pf}, {f32(0.05)}, v{cf}")
    k(f"v_cmp_gt_u32 s[20:21], 3, v{vg}")
    k(f"v_cmp_gt_u32 s[22:23], 2, v{vg}")
    k(f"v_mul_f32 v{t2}, 8.0, v{gf}") if False else k(f"v_mul_f32 v{t2}, {f32(8.0)}, v{gf}")
    c0, c1, s0, s1 = va(), va(), va(), va()
    for jj in range(4):
        for h, (cc, ss) in enumerate(((c0, s0), (c1, s1))):
            j = 2*jj+h
            k(f"v_add_f32 v{t0}, {f32(float(j))}, v{t2}")
            k(f"v_mul_f32 v{t0}, v{t0}, v{pf}")
            k(f"v_cos_f32 v{cc}, v{t0}")
            k(f"v_sin_f32 v{ss}, -v{t0}")
        k(f"v_cvt_pk_bf16_f32 v{C1+jj}, v{c0}, v{c1}")
        k(f"v_cvt_pk_bf16_f32 v{S1+jj}, v{s0}, v{s1}")
        m = "s[20:21]" if jj < 2 else "s[22:23]"
        k(f"v_cndmask_b32 v{C1+jj}, 0, v{C1+jj}, {m}")
        k(f"v_cndmask_b32 v{S1+jj}, 0, v{S1+jj}, {m}")
    TC = va(8, 1); TS = va(8, 1)
    k(f"v_mul_f32 v{pf}, {f32(1/640)}, v{cf}")
    k(f"v_mul_f32 v{t2}, 4.0, v{gf}")
    for t in range(2):
        for r in range(4):
            k(f"v_add_f32 v{t0}, {f32(float(16*t+r))}, v{t2}")
            k(f"v_mul_f32 v{t0}, v{t0}, v{pf}")
            k(f"v_cos_f32 v{TC+4*t+r}, v{t0}")
            k(f"v_sin_f32 v{TS+4*t+r}, v{t0}")
    A2 = {}
    for tp in range(2):
        for t in range(2):
            for part in range(2):
                A2[(tp, t, part)] = va(4)
    k(f"v_mul_f32 v{pf}, {f32(1/32)}, v{cf}")
    k(f"v_and_b32 v{t1}, 1, v{vc}")
    sgn = va()
    k(f"v_mul_u32_u24 v{sgn}, 0x80008000, v{t1}") if False else None
    k(f"v_sub_u32 v{sgn}, 0, v{t1}")
    k(f"v_and_b32 v{sgn}, 0x80008000, v{sgn}")
    for r in range(4):
        k(f"v_add_f32 v{t0}, {f32(float(r))}, v{t2}")
        k(f"v_mul_f32 v{t0}, v{t0}, v{pf}")
        k(f"v_cos_f32 v{c0}, v{t0}")
        k(f"v_sin_f32 v{s0}, v{t0}")
        P = A2[(0,0,0)]+r; Q = A2[(0,0,1)]+r
        k(f"v_cvt_pk_bf16_f32 v{P}, v{c0}, v{s0}")
        k(f"v_cvt_pk_bf16_f32 v{Q}, -v{s0}, v{c0}")
        k(f"v_xor_b32 v{A2[(0,1,0)]+r}, v{sgn}, v{P}")
        k(f"v_xor_b32 v{A2[(0,1,1)]+r}, v{sgn}, v{Q}")
        for t in range(2):
            if r & 1:
                k(f"v_xor_b32 v{A2[(1,t,0)]+r}, 0x80008000, v{A2[(0,t,0)]+r}")
                k(f"v_mov_b32 v{A2[(1,t,1)]+r}, v{A2[(0,t,1)]+r}")
            else:
                k(f"v_mov_b32 v{A2[(1,t,0)]+r}, v{A2[(0,t,0)]+r}")
                k(f"v_xor_b32 v{A2[(1,t,1)]+r}, 0x80008000, v{A2[(0,t,1)]+r}")
    BR = va(4); BI = va(4)
    k(f"v_and_b32 v{t0}, 7, v{vc}")
    k(f"v_cvt_f32_u32 v{pf}, v{t0}")
    k(f"v_mul_f32 v{pf}, {f32(1/2048)}, v{pf}")
    k(f"v_lshrrev_b32 v{t0}, 1, v{vg}")
    k(f"v_lshlrev_b32 v{t0}, 10, v{t0}")
    k(f"v_add_u32 v{t0}, s2, v{t0}")
    k(f"v_cvt_f32_u32 v{t2}, v{t0}")
    k(f"v_and_b32 v{t0}, 1, v{vg}")
    k(f"v_lshrrev_b32 v{t1}, 3, v{vc}")
    k(f"v_cmp_eq_u32 s[24:25], v{t0}, v{t1}")
    for r in range(4):
        k(f"v_add_f32 v{t0}, {f32(256.0*r)}, v{t2}")
        k(f"v_mul_f32 v{t0}, v{t0}, v{pf}")
        k(f"v_cos_f32 v{c0}, v{t0}")
        k(f"v_sin_f32 v{s0}, v{t0}")
        k(f"v_cvt_pk_bf16_f32 v{BR+r}, v{c0}, v{s0}")
        k(f"v_cvt_pk_bf16_f32 v{BI+r}, -v{s0}, v{c0}")
        k(f"v_cndmask_b32 v{BR+r}, 0, v{BR+r}, s[24:25]")
        k(f"v_cndmask_b32 v{BI+r}, 0, v{BI+r}, s[24:25]")
    aXW, aX1, aX2, aU0, aU1, aS1, aS2, aST = va(), va(), va(), va(), va(), va(), va(), va()
    k(f"s_mul_i32 s9, s3, {XROW}")
    k(f"v_lshlrev_b32 v{aXW}, 2, v{vl}")
    k(f"v_add_u32 v{aXW}, s9, v{aXW}")
    k(f"v_min_u32 v{t0}, 2, v{vg}")
    k(f"v_mul_u32_u24 v{t0}, {8*64+32}, v{t0}") if False else None
    k(f"v_mov_b32 v{t1}, {8*64+32}")
    k(f"v_mul_u32_u24 v{t0}, v{t0}, v{t1}")
    k(f"v_lshrrev_b32 v{t1}, 2, v{vc}")
    k(f"v_lshl_add_u32 v{t0}, v{t1}, 6, v{t0}")
    k(f"v_and_b32 v{t1}, 3, v{vc}")
    k(f"v_lshl_add_u32 v{t0}, v{t1}, 3, v{t0}")
    k(f"v_add_u32 v{aX1}, s9, v{t0}")
    k(f"v_add_u32 v{t1}, 256, v{aX1}")
    k(f"v_cndmask_b32 v{aX2}, v{aX1}, v{t1}, s[22:23]")
    k(f"s_mul_i32 s10, s3, {384*4}")
    k(f"s_add_u32 s10, s10, {P1_U}")
    k(f"v_mov_b32 v{t1}, 80")
    k(f"v_mad_u32_u24 v{t0}, v{vg}, v{t1}, v{vc}")
    k(f"v_lshlrev_b32 v{t0}, 2, v{t0}")
    k(f"v_add_u32 v{aU0}, s10, v{t0}")
    k(f"s_add_u32 s10, s10, {4*(320-60)}")
    k(f"v_sub_u32 v{aU1}, s10, v{t0}")
    k(f"v_cmp_ge_u32 s[26:27], 10, v{vc}")
    k(f"v_subrev_u32 v{t0}, 1, v{vc}")
    k(f"v_cmp_ge_u32 s[28:29], 8, v{t0}")
    k("s_or_b32 s30, s28, 1")
    k("s_mov_b32 s31, s29")
    k(f"v_lshrrev_b32 v{t0}, 1, v{vg}")
    k(f"v_mov_b32 v{t1}, {4*384*4}")
    k(f"v_mul_u32_u24 v{t0}, v{t0}, v{t1}")
    k(f"v_lshl_add_u32 v{t0}, v{vc}, 2, v{t0}")
    k(f"v_and_b32 v{t1}, 1, v{vg}")
    k(f"v_lshlrev_b32 v{t1}, 6, v{t1}")
    k("s_lshl_b32 s10, s3, 7")
    k(f"s_add_u32 s10, s10, {P1_U}")
    k(f"v_add_u32 v{t0}, s10, v{t0}")
    k(f"v_add_u32 v{aS1}, v{t0}, v{t1}")
    k("s_cmp_eq_u32 s3, 2")
    k("s_cselect_b64 s[32:33], -1, 0")
    k(f"v_cndmask_b32 v{aS2}, v{aS1}, v{t0}, s[32:33]")
    k(f"v_and_b32 v{t0}, 7, v{vc}")
    k(f"s_mov_b32 s10, {11*256*128}")
    k(f"v_mul_lo_u32 v{aST}, v{t0}, s10")
    k(f"v_lshrrev_b32 v{t0}, 3, v{vc}")
    k(f"v_lshl_add_u32 v{aST}, v{t0}, 6, v{aST}")
    k(f"v_lshl_add_u32 v{aST}, v{vg}, 4, v{aST}")
    k("s_lshl_b32 s34, s3, 15")
    k("s_lshl_b32 s35, s2, 7")
    k("s_add_u32 s34, s34, s35")
    k(f"s_add_u32 s35, s34, {8*32768}")
    for r in (t2, gf, cf, pf, c0, c1, s0, s1, sgn): va.free(r)
    k("s_waitcnt vmcnt(0)")
    ln_row(k, va, vx, 5, 36, 37)
    for i in range(5):
        k(f"ds_write_b32 v{aXW}, v{vx+i} offset:{256*i+32*(i>>1)}")
    XA = va(8, 4)
    k("s_waitcnt lgkmcnt(0)")
    for t in range(2):
        k(f"ds_read_b64_tr_b16 {vr(XA+4*t,2)}, v{aX1} offset:{32*t}")
        k(f"ds_read_b64_tr_b16 {vr(XA+4*t+2,2)}, v{aX2} offset:{32*t}")
    DR = va(8, 4); DI = va(8, 4)
    for t in range(2):
        k(f"s_waitcnt lgkmcnt({2-2*t})")
        mfma(k, DR+4*t, XA+4*t, C1, None)
        mfma(k, DI+4*t, XA+4*t, S1, None)
    TB = XA
    u0, u1 = va(), va()
    for t in range(2):
        for r in range(4):
            i = 4*t+r
            k(f"v_mul_f32 v{u0}, v{DR+i}, v{TC+i}")
            k(f"v_mul_f32 v{u1}, v{DI+i}, v{TC+i}")
            k(f"v_fmac_f32 v{u0}, v{DI+i}, v{TS+i}")
            k(f"v_fma_f32 v{u1}, -v{DR+i}, v{TS+i}, v{u1}")
            k(f"v_cvt_pk_bf16_f32 v{TB+i}, v{u0}, v{u1}")
    for tp in range(2):
        for part, Dd in ((0, DR), (1, DI)):
            mfma(k, Dd+4*tp, A2[(tp,0,part)], TB, None)
    for tp in range(2):
        for part, Dd in ((0, DR), (1, DI)):
            mfma(k, Dd+4*tp, A2[(tp,1,part)], TB+4, Dd+4*tp)
    for i in range(8):
        k(f"v_cvt_pk_bf16_f32 v{TB+i}, v{DR+i}, v{DI+i}")
    k("s_mov_b64 exec, s[26:27]")
    for r in range(4):
        k(f"ds_write_b32 v{aU0}, v{TB+r} offset:{80*r}")
    k("s_mov_b64 exec, s[30:31]")
    k(f"ds_write_b32 v{aU1}, v{TB+4} offset:{80*3}")
    k("s_mov_b64 exec, s[28:29]")
    for r in range(1, 4):
        k(f"ds_write_b32 v{aU1}, v{TB+4+r} offset:{80*(3-r)}")
    k("s_mov_b64 exec, -1")
    k("s_waitcnt lgkmcnt(0)")
    k("s_barrier")
    def s1_tile(addr, uo, soff, Areg, Dr, Di):
        k(f"ds_read2st64_b32 {vr(Areg,2)}, v{addr} offset0:{uo} offset1:{uo+6}")
        k(f"ds_read2st64_b32 {vr(Areg+2,2)}, v{addr} offset0:{uo+12} offset1:{uo+18}")
    def s1_fin(soff, Areg, Dr, Di, O):
        mfma(k, Dr, Areg, BR, None)
        mfma(k, Di, Areg, BI, None)
        for r in range(4):
            k(f"v_cvt_pk_bf16_f32 v{O+r}, v{Dr+r}, v{Di+r}")
        k(f"buffer_store_dwordx4 {vr(O,4)}, v{aST}, s[16:19], s{soff} offen")
    s1_tile(aS1, 0, 34, XA, DR, DI)
    k("s_cmp_lt_u32 s3, 3")
    k("s_cbranch_scc0 p1_one")
    s1_tile(aS2, 4, 35, XA+4, DR+4, DI+4)
    k("s_waitcnt lgkmcnt(2)")
    O = va(8, 4)
    s1_fin(34, XA, DR, DI, O)
    k("s_waitcnt lgkmcnt(0)")
    s1_fin(35, XA+4, DR+4, DI+4, O+4)
    k("s_endpgm")
    k.label("p1_one")
    k("s_waitcnt lgkmcnt(0)")
    s1_fin(34, XA, DR, DI, O)
    k.label("p1_kernel_end")
    k("s_endpgm")
    return k, P1_LDS
```

```python
import sys
from common import *
import p1
def header():
    return open("cdna_kernels/" + NAME + ".s.ref").read().split("; Override launch")[0]
def build(parts):
    ks = []
    if 'p1' in parts:
        k, lds = p1.gen_p1(); ks.append((k, 256, 512, lds))
    for name in ('p2','p3','p4','p5'):
        if name in parts:
            m = __import__(name)
            for item in getattr(m, 'gen_'+name)(): ks.append(item)
    return build_file(header(), ks)
if __name__ == "__main__":
    out = sys.argv[1]; parts = sys.argv[2].split(',')
    open(out, 'w').write(build(parts))
```

```python
import sys
from common import *
import p1
def header():
    return open("cdna_kernels/" + NAME + ".s.ref").read().split("; Override launch")[0]
def empty(name):
    k = Kern(name); k("s_load_dwordx2 s[4:5], s[0:1], 0"); k("s_waitcnt lgkmcnt(0)"); k.label(name + "_end"); k("s_endpgm"); return k
def build(parts):
    ks = []
    E = None
    for name in parts:
        if name == 'p1':
            k, lds = p1.gen_p1(); ks.append((k, 256, 512, lds))
        elif name.startswith('e'):
            if E is None: E = empty("pe_kernel")
            ks.append((E, int(name[1:]), 256, 0))
        else:
            mod, _, fn = name.partition(':')
            m = __import__(mod)
            for item in getattr(m, 'gen_'+(fn or mod))(): ks.append(item)
    return build_file(header(), ks)
if __name__ == "__main__":
    out = sys.argv[1]; parts = sys.argv[2].split(',')
    open(out, 'w').write(build(parts))
```

```python
from asmlib import *
import struct, math

NAME = "sequential_preLN__spectral_gfnet__glu_gated_swiglu__prompt"
S, D, F, NF = 2048, 640, 1536, 321
WS_V1, SZ_V = 0x000000, 8*11*256*128
WS_V2 = 0x300000
WS_HR, SZ_H = 0x600000, S*D*2
WS_LN2 = 0x900000
WS_W13, SZ_W13 = 0xC00000, 16*20*12*1024
WS_W2, SZ_W2 = 0x1000000, F*D*2
WS_HA, SZ_HA = 0x1200000, S*F*2

def f32(x):
    return "0x%08x" % struct.unpack("<I", struct.pack("<f", x))[0]

class Alloc:
    def __init__(self, start=0, limit=256):
        self.used = [False]*limit
        for i in range(start): self.used[i] = True
    def __call__(self, n=1, align=None):
        if align is None: align = 1 if n == 1 else (2 if n < 4 else 4) if n in (2,3,4) else 4
        i = 0
        while i + n <= len(self.used):
            if i % align == 0 and not any(self.used[i:i+n]):
                for k in range(i, i+n): self.used[k] = True
                return i
            i += 1
        raise RuntimeError("out of registers")
    def free(self, a, n=1):
        for k in range(a, a+n):
            assert self.used[k]; self.used[k] = False

def srd(k, s, base_pair, off, nbytes):
    if off:
        k(f"s_add_u32 s{s}, s{base_pair}, {hex(off)}")
        k(f"s_addc_u32 s{s+1}, s{base_pair+1}, 0")
    else:
        k(f"s_mov_b32 s{s}, s{base_pair}")
        k(f"s_mov_b32 s{s+1}, s{base_pair+1}")
    k(f"s_mov_b32 s{s+2}, {hex(nbytes)}")
    k(f"s_mov_b32 s{s+3}, 0x00020000")

def guard(k, nwg):
    k(f"s_cmp_ge_u32 s2, {nwg}")
    k(f"s_cbranch_scc1 {k.name}_end")

def wave_sum(k, v, sdst):
    k(f"v_add_f32_dpp v{v}, v{v}, v{v} quad_perm:[1,0,3,2] row_mask:0xf bank_mask:0xf")
    k(f"v_add_f32_dpp v{v}, v{v}, v{v} quad_perm:[2,3,0,1] row_mask:0xf bank_mask:0xf")
    k(f"v_add_f32_dpp v{v}, v{v}, v{v} row_half_mirror row_mask:0xf bank_mask:0xf")
    k(f"v_add_f32_dpp v{v}, v{v}, v{v} row_mirror row_mask:0xf bank_mask:0xf")
    k(f"v_add_f32_dpp v{v}, v{v}, v{v} row_bcast:15 row_mask:0xa bank_mask:0xf")
    k(f"v_add_f32_dpp v{v}, v{v}, v{v} row_bcast:31 row_mask:0xc bank_mask:0xf")
    k(f"v_readlane_b32 s{sdst}, v{v}, 63")

def mfma(k, d, a, b, c):
    cs = "0" if c is None else vr(c, 4)
    k(f"v_mfma_f32_16x16x32_bf16 {vr(d,4)}, {vr(a,4)}, {vr(b,4)}, {cs}")

def round_bf16(k, dst, src):
    k(f"v_cvt_pk_bf16_f32 v{dst}, v{src}, v{src}")
    k(f"v_and_b32 v{dst}, 0xffff0000, v{dst}")

import os
STAMP = os.environ.get("STAMP", "0") == "1"
WS_DBG = 0x2000000
def stamp(k, i):
    if STAMP: k(f"s_memrealtime s[{80+2*i}:{81+2*i}]")
def stamp_flush(k, kidx, n, vtmp, swave):
    if not STAMP: return
    k("s_load_dwordx2 s[76:77], s[0:1], 72")
    k("s_waitcnt lgkmcnt(0)")
    srd(k, 72, 76, WS_DBG + kidx*0x40000, 0x40000)
    k(f"v_mov_b32 v{vtmp}, 0")
    for i in range(2*n):
        k(f"v_writelane_b32 v{vtmp}, s{80+i}, {i}")
    k("s_lshl_b32 s76, s79, 9")
    k(f"s_lshl_b32 s77, {swave}, 6")
    k("s_add_u32 s76, s76, s77")
    k(f"v_mbcnt_lo_u32_b32 v{vtmp+1}, -1, 0")
    k(f"v_mbcnt_hi_u32_b32 v{vtmp+1}, -1, v{vtmp+1}")
    k(f"v_lshlrev_b32 v{vtmp+1}, 2, v{vtmp+1}")
    k("s_mov_b64 exec, 0xffff")
    k(f"buffer_store_dword v{vtmp}, v{vtmp+1}, s[72:75], s76 offen")
def stamp_init(k):
    if STAMP:
        k("s_mov_b32 s79, s2")
        stamp(k, 0)
        k("s_memtime s[92:93]")

def stamp_end(k, kidx, i, vtmp, swave):
    if not STAMP: return
    k("s_waitcnt vmcnt(0) lgkmcnt(0)")
    stamp(k, i)
    k("s_memtime s[94:95]")
    stamp_flush(k, kidx, 8, vtmp, swave)

def stamp_clk(k, i):
    if STAMP: k(f"s_memtime s[{80+2*i}:{81+2*i}]")
ST = (" " + os.environ["STF"]) if os.environ.get("STF") else ""
```

```python
from common import *

def ln_row(k, va, vx, n, sA, sB, tail=None):
    f = va(2*n, 1); acc = va(2, 1); mu = va(); mb = va(); t = va()
    for i in range(n):
        k(f"v_lshlrev_b32 v{f+2*i}, 16, v{vx+i}")
        k(f"v_and_b32 v{f+2*i+1}, 0xffff0000, v{vx+i}")
    k(f"v_add_f32 v{acc}, v{f}, v{f+1}")
    k(f"v_add_f32 v{acc+1}, v{f+2}, v{f+3}")
    for i in range(4, 2*n):
        k(f"v_add_f32 v{acc+(i&1)}, v{acc+(i&1)}, v{f+i}")
    k(f"v_add_f32 v{acc}, v{acc}, v{acc+1}")
    wave_sum(k, acc, sA)
    k(f"v_mov_b32 v{mu}, {f32(1/640)}")
    k(f"v_mul_f32 v{mu}, s{sA}, v{mu}")
    round_bf16(k, mb, mu)
    d = va(2, 1)
    for i in range(2*n):
        k(f"v_sub_f32 v{d+(i&1)}, v{f+i}, v{mu}")
        if tail and i >= 2*(n-tail[0]): k(f"v_cndmask_b32 v{d+(i&1)}, 0, v{d+(i&1)}, {tail[1]}")
        if i < 2: k(f"v_mul_f32 v{acc+i}, v{d+i}, v{d+i}")
        else: k(f"v_fmac_f32 v{acc+(i&1)}, v{d+(i&1)}, v{d+(i&1)}")
    k(f"v_add_f32 v{acc}, v{acc}, v{acc+1}")
    for i in range(2*n):
        k(f"v_sub_f32 v{f+i}, v{f+i}, v{mb}")
    wave_sum(k, acc, sB)
    for i in range(n):
        k(f"v_cvt_pk_bf16_f32 v{vx+i}, v{f+2*i}, v{f+2*i+1}")
    k(f"v_mov_b32 v{t}, {f32(1/640)}")
    k(f"v_mul_f32 v{t}, s{sB}, v{t}")
    round_bf16(k, t, t)
    k(f"v_add_f32 v{t}, {f32(1e-5)}, v{t}")
    round_bf16(k, t, t)
    k(f"v_sqrt_f32 v{t}, v{t}")
    for i in range(n):
        k(f"v_lshlrev_b32 v{f+2*i}, 16, v{vx+i}")
        k(f"v_and_b32 v{f+2*i+1}, 0xffff0000, v{vx+i}")
    round_bf16(k, t, t)
    k(f"v_rcp_f32 v{t}, v{t}")
    for i in range(2*n):
        k(f"v_mul_f32 v{f+i}, v{f+i}, v{t}")
    for i in range(n):
        k(f"v_cvt_pk_bf16_f32 v{vx+i}, v{f+2*i}, v{f+2*i+1}")
    va.free(f, 2*n); va.free(acc, 2); va.free(mu); va.free(mb); va.free(t); va.free(d, 2)

XROW = 1344
P1_U = 8*XROW
P1_LDS = P1_U + 8*384*4

def gen_p1():
    k = Kern("p1_kernel")
    import p2
    NW = 256 + p2.N_W13 + p2.N_W2
    guard(k, NW)
    stamp_init(k)
    k("s_cmp_ge_u32 s2, 256")
    k("s_cbranch_scc1 p1_rp")
    k("s_load_dwordx2 s[4:5], s[0:1], 0")
    k("s_load_dwordx2 s[6:7], s[0:1], 72")
    va = Alloc(1)
    vl, vg, vc, t0, t1, t2 = va(), va(), va(), va(), va(), va()
    k(f"v_and_b32 v{vl}, 63, v0")
    k(f"v_lshrrev_b32 v{t0}, 6, v0")
    k(f"v_readfirstlane_b32 s3, v{t0}")
    k(f"v_lshrrev_b32 v{vg}, 4, v{vl}")
    k(f"v_and_b32 v{vc}, 15, v0")
    k(f"v_lshlrev_b32 v{t0}, 2, v{vl}")
    k("s_lshl_b32 s8, s3, 8")
    k("s_add_u32 s8, s8, s2")
    k("s_mul_i32 s8, s8, 1280")
    k("s_waitcnt lgkmcnt(0)")
    srd(k, 12, 4, 0, S*D*2)
    vx = va(5, 1)
    for i in range(5):
        k(f"buffer_load_dword v{vx+i}, v{t0}, s[12:15], s8 offen offset:{256*i}")
    srd(k, 16, 6, WS_V1, SZ_V)
    gf, cf = va(), va()
    k(f"v_cvt_f32_u32 v{gf}, v{vg}")
    k(f"v_cvt_f32_u32 v{cf}, v{vc}")
    C1 = va(4); S1 = va(4)
    pf = va()
    k(f"v_mul_f32 v{pf}, {f32(0.05)}, v{cf}")
    k(f"v_cmp_gt_u32 s[20:21], 3, v{vg}")
    k(f"v_cmp_gt_u32 s[22:23], 2, v{vg}")
    k(f"v_mul_f32 v{t2}, 8.0, v{gf}") if False else k(f"v_mul_f32 v{t2}, {f32(8.0)}, v{gf}")
    c0, c1, s0, s1 = va(), va(), va(), va()
    for jj in range(4):
        for h, (cc, ss) in enumerate(((c0, s0), (c1, s1))):
            j = 2*jj+h
            k(f"v_add_f32 v{t0}, {f32(float(j))}, v{t2}")
            k(f"v_mul_f32 v{t0}, v{t0}, v{pf}")
            k(f"v_cos_f32 v{cc}, v{t0}")
            k(f"v_sin_f32 v{ss}, -v{t0}")
        k(f"v_cvt_pk_bf16_f32 v{C1+jj}, v{c0}, v{c1}")
        k(f"v_cvt_pk_bf16_f32 v{S1+jj}, v{s0}, v{s1}")
        m = "s[20:21]" if jj < 2 else "s[22:23]"
        k(f"v_cndmask_b32 v{C1+jj}, 0, v{C1+jj}, {m}")
        k(f"v_cndmask_b32 v{S1+jj}, 0, v{S1+jj}, {m}")
    TC = va(8, 1); TS = va(8, 1)
    k(f"v_mul_f32 v{pf}, {f32(1/640)}, v{cf}")
    k(f"v_mul_f32 v{t2}, 4.0, v{gf}")
    for t in range(2):
        for r in range(4):
            k(f"v_add_f32 v{t0}, {f32(float(16*t+r))}, v{t2}")
            k(f"v_mul_f32 v{t0}, v{t0}, v{pf}")
            k(f"v_cos_f32 v{TC+4*t+r}, v{t0}")
            k(f"v_sin_f32 v{TS+4*t+r}, v{t0}")
    A2 = {}
    for tp in range(2):
        for t in range(2):
            for part in range(2):
                A2[(tp, t, part)] = va(4)
    k(f"v_mul_f32 v{pf}, {f32(1/32)}, v{cf}")
    k(f"v_and_b32 v{t1}, 1, v{vc}")
    sgn = va()
    k(f"v_mul_u32_u24 v{sgn}, 0x80008000, v{t1}") if False else None
    k(f"v_sub_u32 v{sgn}, 0, v{t1}")
    k(f"v_and_b32 v{sgn}, 0x80008000, v{sgn}")
    for r in range(4):
        k(f"v_add_f32 v{t0}, {f32(float(r))}, v{t2}")
        k(f"v_mul_f32 v{t0}, v{t0}, v{pf}")
        k(f"v_cos_f32 v{c0}, v{t0}")
        k(f"v_sin_f32 v{s0}, v{t0}")
        P = A2[(0,0,0)]+r; Q = A2[(0,0,1)]+r
        k(f"v_cvt_pk_bf16_f32 v{P}, v{c0}, v{s0}")
        k(f"v_cvt_pk_bf16_f32 v{Q}, -v{s0}, v{c0}")
        k(f"v_xor_b32 v{A2[(0,1,0)]+r}, v{sgn}, v{P}")
        k(f"v_xor_b32 v{A2[(0,1,1)]+r}, v{sgn}, v{Q}")
        for t in range(2):
            if r & 1:
                k(f"v_xor_b32 v{A2[(1,t,0)]+r}, 0x80008000, v{A2[(0,t,0)]+r}")
                k(f"v_mov_b32 v{A2[(1,t,1)]+r}, v{A2[(0,t,1)]+r}")
            else:
                k(f"v_mov_b32 v{A2[(1,t,0)]+r}, v{A2[(0,t,0)]+r}")
                k(f"v_xor_b32 v{A2[(1,t,1)]+r}, 0x80008000, v{A2[(0,t,1)]+r}")
    BR = va(4); BI = va(4)
    k(f"v_and_b32 v{t0}, 7, v{vc}")
    k(f"v_cvt_f32_u32 v{pf}, v{t0}")
    k(f"v_mul_f32 v{pf}, {f32(1/2048)}, v{pf}")
    k(f"v_lshrrev_b32 v{t0}, 1, v{vg}")
    k(f"v_lshlrev_b32 v{t0}, 10, v{t0}")
    k(f"v_add_u32 v{t0}, s2, v{t0}")
    k(f"v_cvt_f32_u32 v{t2}, v{t0}")
    k(f"v_and_b32 v{t0}, 1, v{vg}")
    k(f"v_lshrrev_b32 v{t1}, 3, v{vc}")
    k(f"v_cmp_eq_u32 s[24:25], v{t0}, v{t1}")
    for r in range(4):
        k(f"v_add_f32 v{t0}, {f32(256.0*r)}, v{t2}")
        k(f"v_mul_f32 v{t0}, v{t0}, v{pf}")
        k(f"v_cos_f32 v{c0}, v{t0}")
        k(f"v_sin_f32 v{s0}, v{t0}")
        k(f"v_cvt_pk_bf16_f32 v{BR+r}, v{c0}, v{s0}")
        k(f"v_cvt_pk_bf16_f32 v{BI+r}, -v{s0}, v{c0}")
        k(f"v_cndmask_b32 v{BR+r}, 0, v{BR+r}, s[24:25]")
        k(f"v_cndmask_b32 v{BI+r}, 0, v{BI+r}, s[24:25]")
    aXW, aX1, aX2, aU0, aU1, aS1, aS2, aST = va(), va(), va(), va(), va(), va(), va(), va()
    k(f"s_mul_i32 s9, s3, {XROW}")
    k(f"v_lshlrev_b32 v{aXW}, 2, v{vl}")
    k(f"v_add_u32 v{aXW}, s9, v{aXW}")
    k(f"v_min_u32 v{t0}, 2, v{vg}")
    k(f"v_mul_u32_u24 v{t0}, {8*64+32}, v{t0}") if False else None
    k(f"v_mov_b32 v{t1}, {8*64+32}")
    k(f"v_mul_u32_u24 v{t0}, v{t0}, v{t1}")
    k(f"v_lshrrev_b32 v{t1}, 2, v{vc}")
    k(f"v_lshl_add_u32 v{t0}, v{t1}, 6, v{t0}")
    k(f"v_and_b32 v{t1}, 3, v{vc}")
    k(f"v_lshl_add_u32 v{t0}, v{t1}, 3, v{t0}")
    k(f"v_add_u32 v{aX1}, s9, v{t0}")
    k(f"v_add_u32 v{t1}, 256, v{aX1}")
    k(f"v_cndmask_b32 v{aX2}, v{aX1}, v{t1}, s[22:23]")
    k(f"s_mul_i32 s10, s3, {384*4}")
    k(f"s_add_u32 s10, s10, {P1_U}")
    k(f"v_mov_b32 v{t1}, 80")
    k(f"v_mad_u32_u24 v{t0}, v{vg}, v{t1}, v{vc}")
    k(f"v_lshlrev_b32 v{t0}, 2, v{t0}")
    k(f"v_add_u32 v{aU0}, s10, v{t0}")
    k(f"s_add_u32 s10, s10, {4*(320-60)}")
    k(f"v_sub_u32 v{aU1}, s10, v{t0}")
    k(f"v_cmp_ge_u32 s[26:27], 10, v{vc}")
    k(f"v_subrev_u32 v{t0}, 1, v{vc}")
    k(f"v_cmp_ge_u32 s[28:29], 8, v{t0}")
    k("s_or_b32 s30, s28, 1")
    k("s_mov_b32 s31, s29")
    k(f"v_lshrrev_b32 v{t0}, 1, v{vg}")
    k(f"v_mov_b32 v{t1}, {4*384*4}")
    k(f"v_mul_u32_u24 v{t0}, v{t0}, v{t1}")
    k(f"v_lshl_add_u32 v{t0}, v{vc}, 2, v{t0}")
    k(f"v_and_b32 v{t1}, 1, v{vg}")
    k(f"v_lshlrev_b32 v{t1}, 6, v{t1}")
    k("s_lshl_b32 s10, s3, 7")
    k(f"s_add_u32 s10, s10, {P1_U}")
    k(f"v_add_u32 v{t0}, s10, v{t0}")
    k(f"v_add_u32 v{aS1}, v{t0}, v{t1}")
    k("s_cmp_eq_u32 s3, 2")
    k("s_cselect_b64 s[32:33], -1, 0")
    k(f"v_cndmask_b32 v{aS2}, v{aS1}, v{t0}, s[32:33]")
    k(f"v_and_b32 v{t0}, 7, v{vc}")
    k(f"s_mov_b32 s10, {11*256*128}")
    k(f"v_mul_lo_u32 v{aST}, v{t0}, s10")
    k(f"v_lshrrev_b32 v{t0}, 3, v{vc}")
    k(f"v_lshl_add_u32 v{aST}, v{t0}, 6, v{aST}")
    k(f"v_lshl_add_u32 v{aST}, v{vg}, 4, v{aST}")
    k("s_lshl_b32 s34, s3, 15")
    k("s_lshl_b32 s35, s2, 7")
    k("s_add_u32 s34, s34, s35")
    k(f"s_add_u32 s35, s34, {8*32768}")
    for r in (t2, gf, cf, pf, c0, c1, s0, s1, sgn): va.free(r)
    k("s_waitcnt vmcnt(0)")
    stamp(k, 1)
    ln_row(k, va, vx, 5, 36, 37)
    for i in range(5):
        k(f"ds_write_b32 v{aXW}, v{vx+i} offset:{256*i+32*(i>>1)}")
    XA = va(8, 4)
    k("s_waitcnt lgkmcnt(0)")
    for t in range(2):
        k(f"ds_read_b64_tr_b16 {vr(XA+4*t,2)}, v{aX1} offset:{32*t}")
        k(f"ds_read_b64_tr_b16 {vr(XA+4*t+2,2)}, v{aX2} offset:{32*t}")
    DR = va(8, 4); DI = va(8, 4)
    for t in range(2):
        k(f"s_waitcnt lgkmcnt({2-2*t})")
        mfma(k, DR+4*t, XA+4*t, C1, None)
        mfma(k, DI+4*t, XA+4*t, S1, None)
    TB = XA
    u0, u1 = va(), va()
    for t in range(2):
        for r in range(4):
            i = 4*t+r
            k(f"v_mul_f32 v{u0}, v{DR+i}, v{TC+i}")
            k(f"v_mul_f32 v{u1}, v{DI+i}, v{TC+i}")
            k(f"v_fmac_f32 v{u0}, v{DI+i}, v{TS+i}")
            k(f"v_fma_f32 v{u1}, -v{DR+i}, v{TS+i}, v{u1}")
            k(f"v_cvt_pk_bf16_f32 v{TB+i}, v{u0}, v{u1}")
    for tp in range(2):
        for part, Dd in ((0, DR), (1, DI)):
            mfma(k, Dd+4*tp, A2[(tp,0,part)], TB, None)
    for tp in range(2):
        for part, Dd in ((0, DR), (1, DI)):
            mfma(k, Dd+4*tp, A2[(tp,1,part)], TB+4, Dd+4*tp)
    for i in range(8):
        k(f"v_cvt_pk_bf16_f32 v{TB+i}, v{DR+i}, v{DI+i}")
    k("s_mov_b64 exec, s[26:27]")
    for r in range(4):
        k(f"ds_write_b32 v{aU0}, v{TB+r} offset:{80*r}")
    k("s_mov_b64 exec, s[30:31]")
    k(f"ds_write_b32 v{aU1}, v{TB+4} offset:{80*3}")
    k("s_mov_b64 exec, s[28:29]")
    for r in range(1, 4):
        k(f"ds_write_b32 v{aU1}, v{TB+4+r} offset:{80*(3-r)}")
    k("s_mov_b64 exec, -1")
    k("s_waitcnt lgkmcnt(0)")
    k("s_barrier")
    stamp(k, 2)
    def s1_tile(addr, uo, soff, Areg, Dr, Di):
        k(f"ds_read2st64_b32 {vr(Areg,2)}, v{addr} offset0:{uo} offset1:{uo+6}")
        k(f"ds_read2st64_b32 {vr(Areg+2,2)}, v{addr} offset0:{uo+12} offset1:{uo+18}")
    def s1_fin(soff, Areg, Dr, Di, O):
        mfma(k, Dr, Areg, BR, None)
        mfma(k, Di, Areg, BI, None)
        for r in range(4):
            k(f"v_cvt_pk_bf16_f32 v{O+r}, v{Dr+r}, v{Di+r}")
        k(f"buffer_store_dwordx4 {vr(O,4)}, v{aST}, s[16:19], s{soff} offen")
    s1_tile(aS1, 0, 34, XA, DR, DI)
    k("s_cmp_lt_u32 s3, 3")
    k("s_cbranch_scc0 p1_one")
    s1_tile(aS2, 4, 35, XA+4, DR+4, DI+4)
    k("s_waitcnt lgkmcnt(2)")
    O = va(8, 4)
    s1_fin(34, XA, DR, DI, O)
    k("s_waitcnt lgkmcnt(0)")
    s1_fin(35, XA+4, DR+4, DI+4, O+4)
    stamp_end(k, 0, 3, 2, "s3")
    k("s_endpgm")
    k.label("p1_one")
    k("s_waitcnt lgkmcnt(0)")
    s1_fin(34, XA, DR, DI, O)
    stamp_end(k, 0, 3, 2, "s3")
    k("s_endpgm")
    k.label("p1_rp")
    p2.repack_dispatch(k, 256, 0)
    k.label("p1_kernel_end")
    k("s_endpgm")
    return k, NW, max(P1_LDS, p2.RP_LDS)
```

```python
from common import *

P2_W = 16384
P2_WQ = 2560
P2_LDS = P2_W + 8*P2_WQ

def cmul_pack(k, dst, re, im, tc, ts, u0, u1):
    k(f"v_mul_f32 v{u0}, v{re}, v{tc}")
    k(f"v_mul_f32 v{u1}, v{im}, v{tc}")
    k(f"v_fmac_f32 v{u0}, v{im}, v{ts}")
    k(f"v_fma_f32 v{u1}, -v{re}, v{ts}, v{u1}")
    k(f"v_cvt_pk_bf16_f32 v{dst}, v{u0}, v{u1}")

def p2_body(k):
    k("s_load_dwordx4 s[4:7], s[0:1], 8")
    k("s_load_dwordx2 s[8:9], s[0:1], 72")
    va = Alloc(1)
    vl, vg, vc, t0, t1, t2 = va(), va(), va(), va(), va(), va()
    k(f"v_and_b32 v{vl}, 63, v0")
    k(f"v_lshrrev_b32 v{t0}, 6, v0")
    k(f"v_readfirstlane_b32 s3, v{t0}")
    k(f"v_lshrrev_b32 v{vg}, 4, v{vl}")
    k(f"v_and_b32 v{vc}, 15, v0")
    k("s_and_b32 s10, s2, 7")
    k("s_lshr_b32 s11, s2, 3")
    aV = va()
    k(f"v_and_b32 v{t0}, 3, v{vl}")
    k(f"v_xor_b32 v{t0}, v{t0}, v{vg}")
    k(f"v_lshlrev_b32 v{t0}, 4, v{t0}")
    k(f"v_lshrrev_b32 v{t1}, 2, v{vl}")
    k(f"v_lshl_add_u32 v{aV}, v{t1}, 7, v{t0}")
    k("s_lshr_b32 s34, s11, 1")
    k("s_mul_i32 s35, s10, 11")
    k("s_add_u32 s34, s34, s35")
    k("s_lshl_b32 s34, s34, 15")
    k("s_and_b32 s35, s11, 1")
    k("s_lshl_b32 s35, s35, 6")
    k("s_add_u32 s34, s34, s35")
    k("s_lshl_b32 s35, s3, 12")
    k("s_add_u32 s34, s34, s35")
    k("s_add_u32 s35, s34, 2048")
    aW = va()
    k("s_lshl_b32 s36, s11, 4")
    k("s_min_u32 s36, s36, 305")
    k("s_mul_i32 s37, s10, 321")
    k("s_add_u32 s36, s36, s37")
    k(f"s_mul_i32 s37, s3, {32*8*321}")
    k("s_add_u32 s36, s36, s37")
    k("s_lshl_b32 s36, s36, 1")
    k(f"v_lshrrev_b32 v{t0}, 1, v{vl}")
    k(f"v_mov_b32 v{t1}, {8*642}")
    k(f"v_mul_u32_u24 v{aW}, v{t0}, v{t1}")
    k(f"v_and_b32 v{t1}, 1, v{vl}")
    k(f"v_lshl_add_u32 v{aW}, v{t1}, 4, v{aW}")
    k("s_lshl_b32 s38, s3, 11")
    k("s_mov_b32 m0, s38")
    k("s_waitcnt lgkmcnt(0)")
    srd(k, 12, 8, WS_V1, SZ_V)
    k(f"buffer_load_dwordx4 v{aV}, s[12:15], s34 offen lds")
    k("s_add_u32 s38, s38, 1024")
    k("s_mov_b32 m0, s38")
    srd(k, 16, 4, 0, S*NF*2)
    k(f"buffer_load_dwordx4 v{aV}, s[12:15], s35 offen lds")
    srd(k, 20, 6, 0, S*NF*2)
    WR = va(4); WI = va(4)
    k(f"buffer_load_dwordx4 {vr(WR,4)}, v{aW}, s[16:19], s36 offen")
    k(f"buffer_load_dwordx4 {vr(WI,4)}, v{aW}, s[20:23], s36 offen")
    srd(k, 24, 8, WS_V2, SZ_V)
    gf, cf, pf, c0, s0 = va(), va(), va(), va(), va()
    FR = va(4); FI = va(4); TC = va(4, 1); TS = va(4, 1)
    k(f"v_cvt_f32_u32 v{gf}, v{vg}")
    k(f"v_cvt_f32_u32 v{cf}, v{vc}")
    k(f"v_mul_f32 v{t2}, 4.0, v{gf}")
    k(f"v_mul_f32 v{pf}, {f32(1/16)}, v{cf}")
    k(f"v_mul_f32 v{cf}, {f32(1/256)}, v{cf}")
    for r in range(4):
        k(f"v_add_f32 v{t0}, {f32(float(r))}, v{t2}")
        k(f"v_mul_f32 v{t1}, v{t0}, v{pf}")
        k(f"v_mul_f32 v{t0}, v{t0}, v{cf}")
        k(f"v_cos_f32 v{c0}, v{t1}")
        k(f"v_sin_f32 v{s0}, v{t1}")
        k(f"v_cos_f32 v{TC+r}, v{t0}")
        k(f"v_sin_f32 v{TS+r}, v{t0}")
        k(f"v_cvt_pk_bf16_f32 v{FR+r}, v{c0}, v{s0}")
        k(f"v_cvt_pk_bf16_f32 v{FI+r}, -v{s0}, v{c0}")
    aVR, aWW, aWR, aLN = va(), va(), va(), va()
    k(f"v_lshrrev_b32 v{t0}, 2, v{vc}")
    k("s_lshr_b32 s39, s3, 1")
    k(f"v_xor_b32 v{t0}, s39, v{t0}")
    k(f"v_lshlrev_b32 v{t0}, 4, v{t0}")
    k(f"v_lshl_add_u32 v{t0}, v{vc}, 6, v{t0}")
    k(f"v_lshl_add_u32 v{t0}, v{vg}, 12, v{t0}")
    k("s_and_b32 s39, s3, 1")
    k("s_lshl_b32 s39, s39, 3")
    k(f"v_add_u32 v{aVR}, s39, v{t0}")
    k("s_lshr_b32 s39, s3, 1")
    k("s_lshl_b32 s39, s39, 4")
    k("s_lshl_b32 s40, s3, 5")
    k("s_add_u32 s39, s39, s40")
    k("s_lshl_b32 s39, s39, 3")
    k(f"s_add_u32 s39, s39, {P2_W}")
    k(f"v_lshrrev_b32 v{t0}, 1, v{vl}")
    k(f"v_lshlrev_b32 v{t0}, 3, v{t0}")
    k(f"v_and_b32 v{t1}, 1, v{vl}")
    k(f"v_mov_b32 v{t2}, {4*P2_WQ}")
    k(f"v_mad_u32_u24 v{t0}, v{t1}, v{t2}, v{t0}")
    k(f"v_add_u32 v{aWW}, s39, v{t0}")
    k("s_cmp_eq_u32 s11, 20")
    k("s_cselect_b32 s39, 7, s3")
    k("s_cselect_b32 s41, 0x03020c0c, 0x01000c0c") if False else None
    k("s_mov_b32 s41, 0x01000c0c")
    k("s_cselect_b32 s41, 0x03020c0c, s41")
    k(f"s_mul_i32 s39, s39, {P2_WQ}")
    k(f"s_add_u32 s39, s39, {P2_W}")
    k(f"v_mov_b32 v{t2}, 80")
    k(f"v_mad_u32_u24 v{t0}, v{vg}, v{t2}, v{vc}")
    k(f"v_lshlrev_b32 v{t0}, 3, v{t0}")
    k(f"v_add_u32 v{aWR}, s39, v{t0}")
    k("s_lshl_b32 s39, s3, 11")
    k(f"v_lshlrev_b32 v{t0}, 4, v{vl}")
    k(f"v_add_u32 v{aLN}, s39, v{t0}")
    for r in (gf, cf, pf, c0, s0): va.free(r)
    k("s_waitcnt vmcnt(1)")
    for kk in range(4):
        k(f"ds_write_b32 v{aWW}, v{WR+kk} offset:{kk*P2_WQ}")
    k("s_waitcnt vmcnt(0)")
    for kk in range(4):
        k(f"ds_write_b32 v{aWW}, v{WI+kk} offset:{kk*P2_WQ+4}")
    k("s_waitcnt lgkmcnt(0)")
    k("s_barrier")
    stamp(k, 1)
    P = va(8, 4)
    for r in range(4):
        k(f"ds_read_b64 {vr(P+2*r,2)}, v{aVR} offset:{1024*r}")
    Wp = va(8, 4)
    for r in range(4):
        k(f"ds_read_b64 {vr(Wp+2*r,2)}, v{aWR} offset:{128*r}")
    X = [va(4), va(4)]
    k("s_waitcnt lgkmcnt(4)")
    for r in range(4):
        k(f"v_mov_b32 v{X[0]+r}, v{P+2*r}")
        k(f"v_mov_b32 v{X[1]+r}, v{P+2*r+1}")
    DR = [va(4), va(4)]; DI = [va(4), va(4)]
    u = [va(), va(), va(), va()]
    def fft(T):
        for c in range(2):
            mfma(k, DR[c], X[c], FR, None)
            mfma(k, DI[c], X[c], FI, None)
        for c in range(2):
            for r in range(4):
                cmul_pack(k, T[c]+r, DR[c]+r, DI[c]+r, TC+r, TS+r, u[2*(r&1)], u[2*(r&1)+1])
        for c in range(2):
            mfma(k, DR[c], FR, T[c], None)
            mfma(k, DI[c], FI, T[c], None)
    fft(X)
    wr = [va(4, 1), va(4, 1)]; wi = [va(4, 1), va(4, 1)]
    k("s_waitcnt lgkmcnt(0)")
    for r in range(4):
        k(f"v_perm_b32 v{wr[0]+r}, v{Wp+2*r}, v{Wp+2*r}, s41")
        k(f"v_perm_b32 v{wi[0]+r}, v{Wp+2*r+1}, v{Wp+2*r+1}, s41")
        k(f"v_and_b32 v{wr[1]+r}, 0xffff0000, v{Wp+2*r}")
        k(f"v_and_b32 v{wi[1]+r}, 0xffff0000, v{Wp+2*r+1}")
    for c in range(2):
        for r in range(4):
            a, b = u[2*(r&1)], u[2*(r&1)+1]
            k(f"v_mul_f32 v{a}, v{DR[c]+r}, v{wr[c]+r}")
            k(f"v_mul_f32 v{b}, v{DR[c]+r}, v{wi[c]+r}")
            k(f"v_fma_f32 v{a}, -v{DI[c]+r}, v{wi[c]+r}, v{a}")
            k(f"v_fmac_f32 v{b}, v{DI[c]+r}, v{wr[c]+r}")
            k(f"v_cvt_pk_bf16_f32 v{X[c]+r}, v{b}, v{a}")
    fft(X)
    for c in range(2):
        for r in range(4):
            k(f"v_cvt_pk_bf16_f32 v{P+2*r+c}, v{DI[c]+r}, v{DR[c]+r}")
    for r in range(4):
        k(f"ds_write_b64 v{aVR}, {vr(P+2*r,2)} offset:{1024*r}")
    k("s_waitcnt lgkmcnt(0)")
    k("s_barrier")
    stamp(k, 2)
    k(f"ds_read_b128 {vr(X[0],4)}, v{aLN}")
    k(f"ds_read_b128 {vr(X[1],4)}, v{aLN} offset:1024")
    k("s_waitcnt lgkmcnt(1)")
    k(f"buffer_store_dwordx4 {vr(X[0],4)}, v{aV}, s[24:27], s34 offen")
    k("s_waitcnt lgkmcnt(0)")
    k(f"buffer_store_dwordx4 {vr(X[1],4)}, v{aV}, s[24:27], s35 offen")
    stamp_end(k, 1, 3, 2, "s3")
    k("s_endpgm")

def repack_body(k, kind):
    w13 = kind == 'w13'
    P = 24 if w13 else 40
    RS = 3072 if w13 else 1280
    LR = P*16
    L = "rp_" + kind
    if w13:
        k("s_load_dwordx4 s[4:7], s[0:1], 32")
    else:
        k("s_load_dwordx2 s[4:5], s[0:1], 48")
    k("s_load_dwordx2 s[8:9], s[0:1], 72")
    va = Alloc(1)
    vl, t0, t1, t2 = va(), va(), va(), va()
    k(f"v_and_b32 v{vl}, 63, v0")
    k(f"v_lshrrev_b32 v{t0}, 6, v0")
    k(f"v_readfirstlane_b32 s3, v{t0}")
    if w13:
        k("s_lshr_b32 s10, s2, 3")
        k("s_and_b32 s11, s2, 7")
        k(f"s_mul_i32 s34, s10, {32*RS}")
        k(f"s_mul_i32 s35, s11, {LR}")
        k("s_add_u32 s34, s34, s35")
        k("s_and_b32 s35, s3, 3")
        k(f"s_mul_i32 s35, s35, {8*RS}")
        k("s_add_u32 s34, s34, s35")
    else:
        k("s_lshr_b32 s10, s2, 1")
        k("s_and_b32 s11, s2, 1")
        k(f"s_mul_i32 s34, s10, {32*RS}")
        k(f"s_mul_i32 s35, s11, {LR}")
        k("s_add_u32 s34, s34, s35")
    aG = [va(), va(), va()]
    magic = (65536 + P - 1)//P
    for i in range(3):
        if w13:
            k(f"v_add_u32 v{t0}, {64*i}, v{vl}")
        else:
            k("s_mul_i32 s35, s3, 192")
            k(f"s_add_u32 s35, s35, {64*i}")
            k(f"v_add_u32 v{t0}, s35, v{vl}")
        k(f"v_mul_u32_u24 v{t1}, {magic}, v{t0}")
        k(f"v_lshrrev_b32 v{t1}, 16, v{t1}")
        k(f"v_mul_u32_u24 v{t2}, {P}, v{t1}")
        k(f"v_sub_u32 v{t2}, v{t0}, v{t2}")
        k(f"v_lshlrev_b32 v{t2}, 4, v{t2}")
        k(f"v_mul_u32_u24 v{t1}, {RS}, v{t1}")
        k(f"v_add_u32 v{aG[i]}, v{t1}, v{t2}")
        if not w13:
            k(f"v_mov_b32 v{t1}, 0x40000000")
            k(f"v_cmp_gt_u32 vcc, 1280, v{t0}")
            k(f"v_cndmask_b32 v{aG[i]}, v{t1}, v{aG[i]}, vcc")
    k("s_mul_i32 s38, s3, 3072")
    k("s_waitcnt lgkmcnt(0)")
    if w13:
        k("s_cmp_ge_u32 s3, 4")
        k("s_cselect_b32 s4, s6, s4")
        k("s_cselect_b32 s5, s7, s5")
    srd(k, 12, 4, 0, D*F*2)
    for i in range(3):
        k("s_mov_b32 m0, s38")
        k(f"buffer_load_dwordx4 v{aG[i]}, s[12:15], s34 offen lds")
        if i < 2: k("s_add_u32 s38, s38, 1024")
    srd(k, 16, 8, WS_W13 if w13 else WS_W2, SZ_W13 if w13 else SZ_W2)
    aR, aO = va(), va()
    r, c, gam = va(), va(), va()
    k(f"v_lshrrev_b32 v{gam}, 4, v{vl}")
    k(f"v_and_b32 v{r}, 15, v{vl}")
    k(f"v_and_b32 v{c}, 3, v{r}")
    k(f"v_lshrrev_b32 v{r}, 2, v{r}")
    if w13:
        k(f"v_lshl_add_u32 v{t0}, v{gam}, 3, v{r}")
        k(f"v_mul_u32_u24 v{t0}, {LR}, v{t0}")
        k(f"v_lshl_add_u32 v{aR}, v{c}, 3, v{t0}")
        EOFF = 4*LR
    else:
        k(f"v_lshl_add_u32 v{t0}, v{gam}, 2, v{r}")
        k(f"v_mul_u32_u24 v{t0}, {LR}, v{t0}")
        k(f"v_mul_u32_u24 v{t1}, 40, v{c}")
        k(f"v_add_u32 v{aR}, v{t0}, v{t1}")
        EOFF = 16*LR
    k(f"v_lshlrev_b32 v{aO}, 4, v{vl}")
    for i in range(3):
        k("s_mul_i32 s35, s3, 3")
        k(f"s_add_u32 s35, s35, {i}")
        if w13:
            k("s_cmp_ge_u32 s35, 12")
            k("s_cselect_b32 s36, 1, 0")
            k("s_mul_i32 s37, s36, 12")
            k("s_sub_u32 s37, s35, s37")
            k("s_and_b32 s39, s37, 1")
            k(f"s_mul_i32 s39, s39, {32*LR}")
            k("s_lshr_b32 s33, s37, 1")
            k("s_lshl_b32 s33, s33, 5")
            k("s_add_u32 s39, s39, s33")
            k("s_mul_i32 s33, s36, 192")
            k(f"s_add_u32 s{40+i}, s39, s33")
            k("s_lshl_b32 s33, s11, 1")
            k("s_add_u32 s33, s33, s36")
            k("s_mul_i32 s33, s33, 20")
            k("s_add_u32 s33, s33, s10")
            k("s_mul_i32 s33, s33, 12")
            k("s_add_u32 s33, s33, s37")
            k(f"s_lshl_b32 s{44+i}, s33, 10")
        else:
            k("s_mul_i32 s36, s35, 13108")
            k("s_lshr_b32 s36, s36, 16")
            k("s_mul_i32 s37, s36, 5")
            k("s_sub_u32 s37, s35, s37")
            k("s_mul_i32 s39, s36, 160")
            k("s_lshl_b32 s33, s37, 3")
            k(f"s_add_u32 s{40+i}, s39, s33")
            k("s_lshl_b32 s33, s11, 2")
            k("s_add_u32 s33, s33, s36")
            k("s_mul_i32 s33, s33, 48")
            k("s_add_u32 s33, s33, s10")
            k("s_mul_i32 s33, s33, 5")
            k("s_add_u32 s33, s33, s37")
            k("s_lshl_b32 s33, s33, 10")
            k("s_cmp_lt_u32 s35, 20")
            k(f"s_cselect_b32 s{44+i}, s33, 0x40000000")
            k(f"s_cselect_b32 s{40+i}, s{40+i}, 0")
    X = [va(4), va(4), va(4)]; aT = [va(), va(), va()]
    for i in range(3):
        k(f"v_add_u32 v{aT[i]}, s{40+i}, v{aR}")
    k("s_waitcnt vmcnt(0)")
    k("s_barrier")
    stamp(k, 1)
    stamp(k, 2)
    for i in range(3):
        k(f"ds_read_b64_tr_b16 {vr(X[i],2)}, v{aT[i]}")
        k(f"ds_read_b64_tr_b16 {vr(X[i]+2,2)}, v{aT[i]} offset:{EOFF}")
    for i in range(3):
        k(f"s_waitcnt lgkmcnt({4-2*i})")
        if not w13:
            k(f"s_cmp_eq_u32 s{44+i}, 0x40000000")
            k(f"s_cbranch_scc1 {L}_done")
        k(f"buffer_store_dwordx4 {vr(X[i],4)}, v{aO}, s[16:19], s{44+i} offen")
    k.label(f"{L}_done")
    stamp_end(k, RP_KIDX, 3, 2, "s3")
    k("s_endpgm")

N_FFT, N_W13, N_W2 = 168, 160, 96
RP_LDS = 24576
def repack_dispatch(k, base, kidx):
    global RP_KIDX
    RP_KIDX = kidx
    k(f"s_sub_u32 s2, s2, {base}")
    k(f"s_cmp_ge_u32 s2, {N_W13}")
    k(f"s_cbranch_scc1 rp_second")
    repack_body(k, 'w13')
    k.label("rp_second")
    k(f"s_sub_u32 s2, s2, {N_W13}")
    repack_body(k, 'w2')

def gen_p2():
    k = Kern("p2_kernel")
    n = N_FFT
    guard(k, n)
    stamp_init(k)
    p2_body(k)
    k.label("p2_kernel_end")
    k("s_endpgm")
    return [(k, n, 512, P2_LDS)]
```

```python
import sys
from common import *
import p1
def header():
    return open("cdna_kernels/" + NAME + ".s.ref").read().split("; Override launch")[0]
def empty(name):
    k = Kern(name); k("s_load_dwordx2 s[4:5], s[0:1], 0"); k("s_waitcnt lgkmcnt(0)"); k.label(name + "_end"); k("s_endpgm"); return k
def build(parts):
    ks = []
    E = None
    cache = {}
    for name in parts:
        if name in cache:
            ks += cache[name]; continue
        n0 = len(ks)
        if name == 'p1':
            k, nw, lds = p1.gen_p1(); ks.append((k, nw, 512, lds))
        elif name.startswith('e'):
            if E is None: E = empty("pe_kernel")
            ks.append((E, int(name[1:]), 256, 0))
        else:
            mod, _, fn = name.partition(':')
            m = __import__(mod)
            for item in getattr(m, 'gen_'+(fn or mod))(): ks.append(item)
        cache[name] = ks[n0:]
    return build_file(header(), ks)
if __name__ == "__main__":
    out = sys.argv[1]; parts = sys.argv[2].split(',')
    open(out, 'w').write(build(parts))
```
